```python
import torch

def _softmax(x, axis=-1):
    return torch.softmax(x, dim=axis)
def _gelu(x):
    return torch.nn.functional.gelu(x, approximate="tanh")
def _silu(x):
    return torch.nn.functional.silu(x)
def _sigmoid(x):
    return torch.sigmoid(x)
def _layernorm(x, axis=-1, eps=1e-5):
    m = x.mean(dim=axis, keepdim=True)
    v = x.var(dim=axis, keepdim=True, unbiased=False)
    return (x - m) / torch.sqrt(v + eps)
def _scatter_add(tgt, idx, src, axis=0):
    return tgt.clone().index_add_(axis, idx, src)
def _segment_sum(src, seg, n):
    out = torch.zeros((n,) + src.shape[1:], dtype=src.dtype)
    return out.index_add_(0, seg, src)
def _pad(x, pw):
    flat = tuple(v for pair in reversed(pw) for v in pair)
    return torch.nn.functional.pad(x, flat)

kernel_name = 'interleave_layers__ssm_conv_h3__glu_gated_reglu__prompt'

def setup_inputs():

    _w = (lambda a: (lambda t: t.to(torch.bfloat16) if t.is_floating_point() else t)(torch.as_tensor(a)))
    def _A_setup():
        B, S, D = 1, 2048, 448
        ks = 4
        return {
            "q": _w((lambda *s: torch.randn(*s, dtype=torch.bfloat16) * 0.05)(B, S, D)),
            "k": _w((lambda *s: torch.randn(*s, dtype=torch.bfloat16) * 0.2)(B, S, D)),
            "v": _w((lambda *s: torch.randn(*s, dtype=torch.bfloat16) * 0.2)(B, S, D)),
            "shift_k": _w((lambda *s: torch.randn(*s, dtype=torch.bfloat16) * 0.2)(D, ks) * 0.5),
            "ssm_k": _w((lambda *s: torch.randn(*s, dtype=torch.bfloat16) * 0.2)(D, S) * (1.0 / S ** 0.5)),
            "ssm_D": _w((lambda *s: torch.randn(*s, dtype=torch.bfloat16) * 0.2)(D)),
        }
    _A_in = _A_setup()

    def _B_setup():
        B, S, D, F = 1, 2048, 448, 1792
        return {
            "x": _w((lambda *s: torch.randn(*s, dtype=torch.bfloat16) * 0.05)(B, S, D)),
            "W_gate": _w((lambda *s: torch.randn(*s, dtype=torch.bfloat16) * 0.2)(D, F) * (2.0 / D) ** 0.5),
            "W_up": _w((lambda *s: torch.randn(*s, dtype=torch.bfloat16) * 0.2)(D, F) * (2.0 / D) ** 0.5),
            "W_down": _w((lambda *s: torch.randn(*s, dtype=torch.bfloat16) * 0.2)(F, D) * (1.0 / F) ** 0.5),
        }
    _B_in = _B_setup()

    return {
        "A_q": _A_in["q"],
        "A_k": _A_in["k"],
        "A_v": _A_in["v"],
        "A_shift_k": _A_in["shift_k"],
        "A_ssm_k": _A_in["ssm_k"],
        "A_ssm_D": _A_in["ssm_D"],
        "B_x": _B_in["x"],
        "B_W_gate": _B_in["W_gate"],
        "B_W_up": _B_in["W_up"],
        "B_W_down": _B_in["W_down"],
    }

def reference(A_q, A_k, A_v, A_shift_k, A_ssm_k, A_ssm_D, B_x, B_W_gate, B_W_up, B_W_down):
    def _A_ref(q, k, v, shift_k, ssm_k, ssm_D):
        B, S, D = q.shape
        ks = shift_k.shape[-1]
        k_pad = _pad(k, ((0, 0), (ks - 1, 0), (0, 0)))
        k_shift = torch.zeros_like(k)
        for t in range(ks):
            k_shift = k_shift + k_pad[:, t:t + S, :] * shift_k[:, ks - 1 - t][None, None, :]
        kv = k_shift * v
        L = 2 * S
        kv_pad = _pad(kv, ((0, 0), (0, S), (0, 0)))
        kf_pad = _pad(ssm_k, ((0, 0), (0, S)))
        kv_f = (lambda x, axes=(-2,-1): torch.fft.rfft2(x.float(), dim=axes))(kv_pad[:, None, :, :], axes=(1, 2))
        kf_f = (lambda x, axes=(-2,-1): torch.fft.rfft2(x.float(), dim=axes))(kf_pad[:, None, :], axes=(1, 2))
        kf_f = (lambda x, *d: x.permute(*d))(kf_f, 1, 2, 0)
        y_f = kv_f * kf_f[None, :, :, :]
        y = (lambda x, s, axes=(-2,-1): torch.fft.irfft2(x, s=s, dim=axes).to(torch.bfloat16))(y_f, (1, L), axes=(1, 2))[:, 0, :S, :]
        y = y + kv * ssm_D[None, None, :]
        return q * y

    def _B_ref(x, W_gate, W_up, W_down):
        gate = torch.einsum("bsd,df->bsf", x, W_gate)
        up = torch.einsum("bsd,df->bsf", x, W_up)
        gate = gate * (lambda x, dt: x.to(dt))(gate > 0, gate.dtype)
        h = gate * up
        return torch.einsum("bsf,fd->bsd", h, W_down)

    x = A_q
    x = x + _A_ref(_layernorm(x, axis=-1), A_k, A_v, A_shift_k, A_ssm_k, A_ssm_D)
    x = x + _B_ref(_layernorm(x, axis=-1), B_W_gate, B_W_up, B_W_down)
    x = x + _A_ref(_layernorm(x, axis=-1), A_k, A_v, A_shift_k, A_ssm_k, A_ssm_D)
    x = x + _B_ref(_layernorm(x, axis=-1), B_W_gate, B_W_up, B_W_down)
    return x
```

```python
import re

REG_RE = re.compile(r'^(-|\|)?(abs\()?([vas])(\d+|\[(\d+):(\d+)\])\)?\|?$')

def parse_reg(tok):
    tok = tok.strip()
    if tok in ('vcc',): return [('s', 106), ('s', 107)]
    if tok == 'vcc_lo': return [('s', 106)]
    if tok == 'vcc_hi': return [('s', 107)]
    if tok == 'exec': return [('s', 126), ('s', 127)]
    if tok == 'exec_lo': return [('s', 126)]
    if tok == 'exec_hi': return [('s', 127)]
    if tok == 'm0': return [('s', 124)]
    m = REG_RE.match(tok)
    if not m: return []
    k = m.group(3)
    if m.group(5) is not None:
        return [(k, i) for i in range(int(m.group(5)), int(m.group(6)) + 1)]
    return [(k, int(m.group(4)))]

TRANS = ('v_exp_f32', 'v_log_f32', 'v_rcp_f32', 'v_rsq_f32', 'v_sqrt_f32', 'v_sin_f32', 'v_cos_f32')

class Ins:
    __slots__ = ('text', 'op', 'kind', 'rd', 'wr', 'pos', 'srcc', 'dpp', 'wide_store_data', 'passes')

class Emitter:
    def __init__(self):
        self.lines = []
        self.hist = []
        self.pos = 0
        self.vm = []
        self.lg = []
        self.nid = 0
        self.nops_inserted = 0
        self.count = 0

    def raw(self, s):
        self.lines.append(s)

    def comment(self, s):
        self.lines.append('    ; ' + s)

    def label(self, name):
        self.lines.append(name + ':')

    def fence(self, n=16):
        need = 0
        for h in self.hist:
            d = self.pos - h.pos - 1
            mx = 0
            if h.kind == 'mfma': mx = {8: 12, 4: 8, 16: 20, 2: 5}[h.passes]
            elif h.kind in ('valu', 'trans', 'dot'): mx = 5
            elif h.kind == 'salu': mx = 1
            elif h.kind == 'vmem': mx = 2
            need = max(need, mx - d)
        self._nop(need)
        self.hist = []

    def _nop(self, n):
        while n > 0:
            k = min(n, 16)
            self.lines.append(f'    s_nop {k-1}')
            self.pos += k
            self.nops_inserted += k
            n -= k

    def _classify(self, text):
        ins = Ins()
        ins.text = text
        t = text.split(';')[0].strip()
        parts = t.split(None, 1)
        op = parts[0]
        ins.op = op
        rest = parts[1] if len(parts) > 1 else ''
        toks = [x.strip() for x in rest.split(',')] if rest else []
        mods = ''
        if toks:
            sp = toks[-1].split(None, 1)
            toks[-1] = sp[0]
            mods = sp[1] if len(sp) > 1 else ''
        regs = [parse_reg(x) for x in toks]
        ins.rd, ins.wr, ins.srcc = set(), set(), set()
        ins.dpp = ('row_' in mods) or ('quad_perm' in mods) or ('wave_' in mods) or op.endswith('_dpp')
        ins.wide_store_data = set()
        ins.passes = 0
        base = op
        for suf in ('_e32', '_e64', '_dpp', '_sdwa'):
            if base.endswith(suf): base = base[:-len(suf)]
        allr = [r for x in regs for r in x]
        EXEC = [('s', 126), ('s', 127)]
        if base.startswith('v_mfma'):
            ins.kind = 'mfma'
            ins.wr = set(regs[0]); ins.rd = set(regs[1] + regs[2] + regs[3]); ins.srcc = set(regs[3])
            ins.passes = 8 if '32x32x16' in base else 4 if '16x16x32' in base else 16
        elif base.startswith('buffer_') or base.startswith('global_'):
            ins.kind = 'vmem'
            is_lds = bool(re.search(r'\blds\b', mods)) or '_lds_' in base
            if 'store' in base:
                ins.rd = set(allr)
                if 'x4' in base or 'x3' in base:
                    ins.wide_store_data = set(regs[0] if base.startswith('buffer_') else regs[1])
            elif 'atomic' in base:
                ins.rd = set(allr)
                if re.search(r'\bsc0\b', mods):
                    ins.wr = set(regs[0])
                    if base.startswith('global_'): ins.rd = set(r for x in regs[1:] for r in x)
            elif base in ('buffer_wbl2', 'buffer_inv'):
                pass
            elif is_lds:
                ins.rd = set(allr) | {('s', 124)}
            else:
                ins.wr = set(regs[0]); ins.rd = set(r for x in regs[1:] for r in x)
        elif base.startswith('ds_'):
            ins.kind = 'ds'
            if base.startswith('ds_write') or base in ('ds_add_f32', 'ds_add_u32'):
                ins.rd = set(allr)
            else:
                ins.wr = set(regs[0]); ins.rd = set(r for x in regs[1:] for r in x)
        elif base.startswith('s_load') or base.startswith('s_buffer_load') or base in ('s_memtime', 's_memrealtime'):
            ins.kind = 'smem'
            ins.wr = set(regs[0]); ins.rd = set(r for x in regs[1:] for r in x)
        elif base.startswith('v_'):
            ins.kind = 'trans' if base in TRANS else ('dot' if base.startswith('v_dot') else 'valu')
            if base.startswith('v_cmpx'):
                ins.wr = set(regs[0]) | set(EXEC); ins.rd = set(r for x in regs[1:] for r in x)
            elif base in ('v_permlane32_swap_b32', 'v_permlane16_swap_b32', 'v_swap_b32'):
                ins.wr = set(allr); ins.rd = set(allr)
            elif base in ('v_add_co_u32', 'v_sub_co_u32', 'v_addc_co_u32', 'v_subb_co_u32', 'v_subrev_co_u32', 'v_mad_u64_u32', 'v_div_scale_f32'):
                ins.wr = set(regs[0] + regs[1]); ins.rd = set(r for x in regs[2:] for r in x)
            elif base in ('v_fmac_f32', 'v_dot2c_f32_bf16', 'v_pk_fmac_f16', 'v_writelane_b32', 'v_dot2c_f32_f16'):
                ins.wr = set(regs[0]); ins.rd = set(allr)
            elif base == 'v_nop':
                pass
            else:
                ins.wr = set(regs[0]); ins.rd = set(r for x in regs[1:] for r in x)
                if ins.dpp: ins.rd |= set(regs[0])
        elif base.startswith('s_'):
            ins.kind = 'salu'
            if base.startswith('s_cmp') or base.startswith('s_cbranch') or base in ('s_branch', 's_barrier', 's_waitcnt', 's_nop', 's_endpgm', 's_sleep', 's_setprio', 's_bitcmp0_b32', 's_bitcmp1_b32'):
                ins.rd = set(allr)
            elif 'saveexec' in base:
                ins.wr = set(regs[0]) | set(EXEC); ins.rd = set(r for x in regs[1:] for r in x) | set(EXEC)
            elif base in ('s_addk_i32', 's_mulk_i32'):
                ins.wr = set(regs[0]); ins.rd = set(regs[0])
            else:
                ins.wr = set(regs[0]) if regs else set(); ins.rd = set(r for x in regs[1:] for r in x)
        else:
            raise ValueError('unknown op ' + text)
        ins.op = base
        return ins

    def _need(self, p, c):
        n = 0
        isv = lambda k: k in ('valu', 'trans', 'dot')
        pw_v = {r for r in p.wr if r[0] in 'va'}
        pw_s = {r for r in p.wr if r[0] == 's'}
        c_touch = c.rd | c.wr
        if p.kind == 'mfma':
            T = {2: (2, 4, 5, 1), 4: (0, 6, 8, 3), 8: (0, 10, 12, 7), 16: (0, 18, 20, 15)}[p.passes]
            if c.kind == 'mfma':
                if c.srcc & p.wr:
                    if c.srcc == p.wr and c.passes == p.passes: n = max(n, T[0])
                    else: n = max(n, T[1])
                if (c.rd - c.srcc) & p.wr: n = max(n, T[2])
                if (c.wr & p.wr) and not (c.srcc == p.wr): n = max(n, T[2])
            else:
                if c_touch & p.wr: n = max(n, T[2])
                if (isv(c.kind) or c.kind in ('ds', 'vmem')) and (c.wr & p.srcc): n = max(n, T[3])
        if isv(p.kind):
            if c.kind == 'mfma' and (c.rd & pw_v): n = max(n, 2)
            if c.kind == 'mfma' and (pw_s & {('s', 126), ('s', 127)}): n = max(n, 4)
            if c.kind == 'vmem' and (c.rd & pw_s): n = max(n, 5)
            if isv(c.kind) and (c.rd & pw_s): n = max(n, 4 if c.op in ('v_readlane_b32', 'v_writelane_b32') else 2)
            if isv(c.kind) and c.op in ('v_cndmask_b32', 'v_addc_co_u32', 'v_subb_co_u32', 'v_div_fmas_f32') and (pw_s & {('s', 106), ('s', 107)}): n = max(n, 4 if c.op == 'v_div_fmas_f32' else 2)
            if c.op in ('v_readfirstlane_b32', 'v_readlane_b32') and (c.rd & pw_v): n = max(n, 1)
            if c.op.startswith('v_permlane') and (c.rd & pw_v): n = max(n, 2)
            if isv(c.kind) and c.dpp and (c.rd & pw_v): n = max(n, 2)
            if (pw_s & {('s', 126), ('s', 127)}):
                if c.dpp: n = max(n, 5)
                if c.op in ('v_readfirstlane_b32', 'v_readlane_b32', 'v_writelane_b32') or c.op.startswith('v_permlane'): n = max(n, 4)
            if p.kind == 'trans' and isv(c.kind) and c.kind != 'trans' and (c_touch & pw_v): n = max(n, 1)
            if p.kind == 'trans' and c.kind in ('vmem', 'ds', 'mfma') and (c.rd & pw_v): n = max(n, 2)
            if p.kind == 'dot' and (c_touch & pw_v):
                if c.op == p.op and isv(c.kind):
                    acc_only = not (pw_v & self._dot_ab(c))
                    n = max(n, 0 if acc_only else 3)
                else:
                    n = max(n, 3)
            if c.kind == 'salu' and (c.rd & pw_s): n = max(n, 1)
        if p.kind == 'salu':
            if ('s', 124) in p.wr and c.kind == 'vmem' and ('s', 124) in c.rd: n = max(n, 1)
        if p.kind == 'vmem' and p.wide_store_data and (c.wr & p.wide_store_data):
            n = max(n, 2)
        return n

    def _dot_ab(self, c):
        t = c.text.split(';')[0].strip().split(None, 1)[1]
        toks = [x.strip().split()[0] for x in t.split(',')]
        return set(parse_reg(toks[1]) + parse_reg(toks[2]))

    def _auto_wait(self, ins):
        touch = ins.rd | ins.wr
        vm_need = None
        for i, o in enumerate(self.vm):
            if o['regs'] & touch: vm_need = i
        lg_need = None
        for i, o in enumerate(self.lg):
            if o['regs'] & touch: lg_need = i
        self._wait_idx(vm_need, lg_need)

    def _wait_idx(self, vi, li):
        parts = []
        if vi is not None:
            n = len(self.vm) - 1 - vi
            n = min(n, 63)
            parts.append(f'vmcnt({n})')
            self.vm = self.vm[len(self.vm) - n:] if n else []
        if li is not None:
            if any(o['smem'] for o in self.lg):
                n = 0
            else:
                n = min(len(self.lg) - 1 - li, 15)
            parts.append(f'lgkmcnt({n})')
            self.lg = self.lg[len(self.lg) - n:] if n else []
        if parts:
            self.lines.append('    s_waitcnt ' + ' '.join(parts))
            self.pos += 1

    def wait_vm(self, tok):
        for i, o in enumerate(self.vm):
            if o['id'] == tok:
                self._wait_idx(i, None); return

    def wait_lg(self, tok):
        for i, o in enumerate(self.lg):
            if o['id'] == tok:
                self._wait_idx(None, i); return

    def wait_all(self, vm=True, lg=True, force=False):
        parts = []
        if vm and (self.vm or force): parts.append('vmcnt(0)'); self.vm = []
        if lg and (self.lg or force): parts.append('lgkmcnt(0)'); self.lg = []
        if parts:
            self.lines.append('    s_waitcnt ' + ' '.join(parts)); self.pos += 1

    def __call__(self, text):
        ins = self._classify(text)
        self._auto_wait(ins)
        need = 0
        for h in self.hist:
            d = self.pos - h.pos - 1
            need = max(need, self._need(h, ins) - d)
        self._nop(need)
        ins.pos = self.pos
        self.pos += 1
        if ins.op == 's_nop':
            self.pos += int(text.split()[1])
        self.lines.append('    ' + text)
        self.count += 1
        self.hist.append(ins)
        if len(self.hist) > 40: self.hist.pop(0)
        tok = None
        if ins.kind == 'vmem':
            self.nid += 1; tok = self.nid
            self.vm.append(dict(id=tok, regs=set(ins.wr)))
            assert len(self.vm) <= 63 + 64, 'too many vm'
        elif ins.kind == 'ds':
            self.nid += 1; tok = self.nid
            self.lg.append(dict(id=tok, regs=set(ins.wr), smem=False))
        elif ins.kind == 'smem':
            self.nid += 1; tok = self.nid
            self.lg.append(dict(id=tok, regs=set(ins.wr), smem=True))
        return tok

    def text(self):
        return '\n'.join(self.lines) + '\n'

def vr(i, n=1):
    return f'v{i}' if n == 1 else f'v[{i}:{i+n-1}]'
def ar(i, n=1):
    return f'a{i}' if n == 1 else f'a[{i}:{i+n-1}]'
def sr(i, n=1):
    return f's{i}' if n == 1 else f's[{i}:{i+n-1}]'
```

```python
import sys
from emit import Emitter, vr, ar, sr

NAME = 'interleave_layers__ssm_conv_h3__glu_gated_reglu__prompt'
S, D, F = 2048, 448, 1792
XB = S * D * 2
KVR   = 0x0000000
X0T   = 0x01C0000
X1    = 0x0380000
YT    = 0x0540000
X3    = 0x0700000
ST0   = 0x08C0000
R2    = 0x08C8000
EXCH  = 0x08D0000
FLAGS = 0x0910000
WD    = 0x0920000
WGU   = 0x0AB0000
H0    = 0x0E00000
H1    = 0x1500000
WS_END = 0x1C00000
GA, GB = 5, 2
NFR = 7 * 29
EPS = 1e-5

import struct
def f32bits(x): return struct.unpack('<I', struct.pack('<f', x))[0]

SP = 16
def PTR(i): return SP + 2 * i
S_WS = 44

def srd(e, dst, ptr_idx, nbytes):
    e(f's_mov_b32 s{dst}, s{PTR(ptr_idx)}')
    e(f's_and_b32 s{dst+1}, s{PTR(ptr_idx)+1}, 0xffff')
    e(f's_mov_b32 s{dst+2}, {nbytes:#x}')
    e(f's_mov_b32 s{dst+3}, 0x00020000')

def prologue(e, name, nwg):
    e.raw(f'.globl {name}\n.p2align 8\n.type {name},@function\n{name}:')
    e(f's_cmp_ge_u32 s2, {nwg}')
    e(f's_cbranch_scc1 {name}_end')
    e('s_load_dwordx16 s[16:31], s[0:1], 0')
    e('s_load_dwordx8 s[32:39], s[0:1], 64')
    e('s_load_dwordx2 s[40:41], s[0:1], 96')
    e('v_lshrrev_b32 v1, 6, v0')
    e('v_and_b32 v0, 63, v0')
    e('v_readfirstlane_b32 s3, v1')
    e.wait_all()
    srd(e, S_WS, 12, WS_END)

def epilogue(e, name):
    e.fence()
    e.label(f'{name}_end')
    e('s_endpgm')
    e.vm = []; e.lg = []; e.hist = []

def div7(e, q, r, x, tmp):
    e(f's_mov_b32 s{tmp}, 0x24924925')
    e(f's_mul_hi_u32 s{q}, s{x}, s{tmp}')
    e(f's_mul_i32 s{tmp}, s{q}, 7')
    e(f's_sub_u32 s{r}, s{x}, s{tmp}')

def gen_prep(e):
    N = 'prep_kernel'
    prologue(e, N, 256)
    e('s_cmp_eq_u32 s3, 4')
    e(f's_cbranch_scc1 {N}_B')
    e('s_cmp_eq_u32 s3, 7')
    e(f's_cbranch_scc1 {N}_D')
    e('s_cmp_ge_u32 s2, 224')
    e(f's_cbranch_scc1 {N}_end')
    e('s_cmp_gt_u32 s3, 4')
    e(f's_cbranch_scc1 {N}_C')
    srd(e, 48, 1, XB); srd(e, 52, 2, XB); srd(e, 56, 3, D * 8)
    div7(e, 4, 5, 2, 6)
    e('s_lshl_b32 s6, s4, 6')
    e('s_lshl_b32 s7, s3, 4')
    e('s_add_u32 s6, s6, s7')
    e('v_lshrrev_b32 v1, 5, v0')
    e('v_lshlrev_b32 v1, 3, v1')
    e('v_add_u32 v1, s6, v1')
    e('v_and_b32 v2, 31, v0')
    e('v_mul_u32_u24 v3, 896, v1')
    e('s_lshl_b32 s7, s5, 7')
    e('v_lshl_add_u32 v3, v2, 2, v3')
    e('v_add_u32 v3, s7, v3')
    e('v_subrev_u32 v4, 2688, v3')
    e('s_movk_i32 s8, 3584')
    e('s_lshl_b32 s9, s5, 9')
    e('v_lshlrev_b32 v5, 4, v2')
    e('v_add_u32 v5, s9, v5')
    K0, V0, W0 = 16, 28, 36
    e(f'buffer_load_dwordx4 v[{W0}:{W0+3}], v5, s[56:59], 0 offen')
    for i in range(3):
        e(f'buffer_load_dword v{K0+i}, v4, s[48:51], 0 offen offset:{896*i}')
    for i in range(8):
        so, off = ('0', 896 * i) if i < 4 else ('s8', 896 * (i - 4))
        e(f'buffer_load_dword v{K0+3+i}, v3, s[48:51], {so} offen offset:{off}')
        e(f'buffer_load_dword v{V0+i}, v3, s[52:55], {so} offen offset:{off}')
    e('s_lshl_b32 s9, s5, 18')
    e(f's_add_u32 s9, s9, {KVR + 4080}')
    e('v_lshlrev_b32 v6, 13, v2')
    e('v_lshlrev_b32 v7, 1, v1')
    e('v_sub_u32 v6, v6, v7')
    e('v_add_u32 v6, s9, v6')
    e('s_mov_b32 s10, 0xffff0000')
    WF = 40
    for ch in range(2):
        for t in range(4):
            src = W0 + 2 * ch + t // 2
            if t % 2 == 0: e(f'v_lshlrev_b32 v{WF+4*ch+t}, 16, v{src}')
            else: e(f'v_and_b32 v{WF+4*ch+t}, s10, v{src}')
    KF = 48
    for i in range(11):
        e(f'v_lshlrev_b32 v{KF+i}, 16, v{K0+i}')
        e(f'v_and_b32 v{KF+11+i}, s10, v{K0+i}')
    R = 72
    for ch in range(2):
        for i in range(8):
            d = R + 8 * ch + i
            kk = KF + 11 * ch + i + 3
            e(f'v_mul_f32 v{d}, v{WF+4*ch+3}, v{kk-3}')
            e(f'v_fmac_f32 v{d}, v{WF+4*ch+2}, v{kk-2}')
            e(f'v_fmac_f32 v{d}, v{WF+4*ch+1}, v{kk-1}')
            e(f'v_fmac_f32 v{d}, v{WF+4*ch+0}, v{kk}')
    for i in range(8):
        e(f'v_lshlrev_b32 v8, 16, v{V0+i}')
        e(f'v_and_b32 v9, s10, v{V0+i}')
        e(f'v_mul_f32 v{R+i}, v{R+i}, v8')
        e(f'v_mul_f32 v{R+8+i}, v{R+8+i}, v9')
    O = 88
    for ch in range(2):
        for d in range(4):
            e(f'v_cvt_pk_bf16_f32 v{O+4*ch+d}, v{R+8*ch+7-2*d}, v{R+8*ch+6-2*d}')
    e('s_movk_i32 s8, 4096')
    e(f'buffer_store_dwordx4 v[{O}:{O+3}], v6, s[44:47], 0 offen')
    e(f'buffer_store_dwordx4 v[{O+4}:{O+7}], v6, s[44:47], s8 offen')
    e('s_endpgm')
    e.vm = []; e.lg = []; e.hist = []
    e.label(f'{N}_B')
    srd(e, 48, 0, XB)
    e('v_and_b32 v1, 7, v0')
    e('v_lshrrev_b32 v2, 3, v0')
    e('s_lshl_b32 s4, s2, 3')
    e('v_add_u32 v1, s4, v1')
    e('v_mul_u32_u24 v3, 896, v1')
    e('v_lshl_add_u32 v3, v2, 4, v3')
    L = 16
    for t in range(7):
        e(f'buffer_load_dwordx4 v[{L+4*t}:{L+4*t+3}], v3, s[48:51], 0 offen offset:{128*t}')
    e('v_mov_b32 v8, -1'); e('v_mov_b32 v9, -1'); e('v_mov_b32 v10, -1'); e('v_mov_b32 v11, -1')
    e('s_lshl_b32 s5, s2, 10')
    e(f's_add_u32 s5, s5, {EXCH}')
    e('v_lshlrev_b32 v4, 4, v0')
    e('buffer_store_dwordx4 v[8:11], v4, s[44:47], s5 offen')
    e('v_lshrrev_b32 v5, 5, v1')
    e('v_mul_u32_u24 v5, 28672, v5')
    e('v_lshl_add_u32 v5, v2, 9, v5')
    e('v_and_b32 v6, 31, v1')
    e('v_lshl_add_u32 v5, v6, 4, v5')
    e(f's_mov_b32 s6, {X0T}')
    e('s_mov_b32 s7, 0x3f803f80')
    e('v_mov_b32 v12, 0'); e('v_mov_b32 v13, 0')
    for t in range(7):
        e(f'buffer_store_dwordx4 v[{L+4*t}:{L+4*t+3}], v5, s[44:47], s6 offen')
        if t < 6: e('s_add_u32 s6, s6, 4096')
        for d in range(4):
            e(f'v_dot2c_f32_bf16 v12, s7, v{L+4*t+d}')
            e(f'v_dot2c_f32_bf16 v13, v{L+4*t+d}, v{L+4*t+d}')
    for r in (12, 13):
        e(f'v_add_f32_dpp v{r}, v{r}, v{r} row_ror:8 row_mask:0xf bank_mask:0xf')
        e(f'v_mov_b32 v14, v{r}')
        e(f'v_permlane16_swap_b32 v{r}, v14')
        e(f'v_add_f32 v{r}, v{r}, v14')
        e(f'v_mov_b32 v14, v{r}')
        e(f'v_permlane32_swap_b32 v{r}, v14')
        e(f'v_add_f32 v{r}, v{r}, v14')
    e(f'v_mul_f32 v12, {f32bits(1.0/D):#x}, v12')
    e(f'v_mul_f32 v13, {f32bits(1.0/D):#x}, v13')
    e('v_fma_f32 v13, -v12, v12, v13')
    e('v_max_f32 v13, 0, v13')
    e(f'v_add_f32 v13, {f32bits(EPS):#x}, v13')
    e('v_rsq_f32 v13, v13')
    e('v_lshlrev_b32 v7, 3, v1')
    e(f's_mov_b32 s6, {ST0}')
    e('s_mov_b64 exec, 0xff')
    e('buffer_store_dwordx2 v[12:13], v7, s[44:47], s6 offen')
    e('s_endpgm')
    e.vm = []; e.lg = []; e.hist = []

    def transpose_and_store(Lr, Or):
        e('s_mov_b32 s10, 0x05040100')
        e('s_mov_b32 s11, 0x07060302')
        for j in range(8):
            for p in range(4):
                e(f'v_perm_b32 v{Or+4*j+p}, v{Lr+4*(2*p+1)+j//2}, v{Lr+4*(2*p)+j//2}, s{10+(j&1)}')
            e(f'buffer_store_dwordx4 v[{Or+4*j}:{Or+4*j+3}], v5, s[44:47], 0 offen offset:{(8*(j>>2)+(j&3))*16}')
    e.label(f'{N}_C')
    e('s_mov_b32 s6, 0x9249250')
    e('s_mul_hi_u32 s4, s2, s6')
    e('s_mul_i32 s6, s4, 28')
    e('s_sub_u32 s5, s2, s6')
    e('s_lshl_b32 s5, s5, 1')
    e('s_add_u32 s5, s5, s3')
    e('s_sub_u32 s5, s5, 5')
    e('s_and_b32 s6, s4, 3')
    e('s_lshr_b32 s7, s4, 2')
    e('s_cmp_eq_u32 s7, 0')
    e(f's_cselect_b32 s48, s{PTR(7)}, s{PTR(8)}')
    e(f's_cselect_b32 s49, s{PTR(7)+1}, s{PTR(8)+1}')
    e('s_and_b32 s49, s49, 0xffff')
    e(f's_mov_b32 s50, {D*F*2:#x}')
    e('s_mov_b32 s51, 0x00020000')
    e('v_and_b32 v1, 3, v0')
    e('v_lshrrev_b32 v2, 2, v0')
    e('s_mul_i32 s8, s6, 112*3584')
    e('s_lshl_b32 s9, s5, 6')
    e('s_add_u32 s8, s8, s9')
    e('v_mul_u32_u24 v3, 8*3584, v2')
    e('v_lshl_add_u32 v3, v1, 4, v3')
    e('v_add_u32 v3, s8, v3')
    e('v_cmp_gt_u32 vcc, 14, v2')
    e('v_mov_b32 v4, 0x7ff00000')
    e('v_cndmask_b32 v3, v4, v3, vcc')
    Lr, Or = 16, 48
    e('s_mov_b32 s12, 0')
    for i in range(8):
        e(f'buffer_load_dwordx4 v[{Lr+4*i}:{Lr+4*i+3}], v3, s[48:51], s12 offen')
        if i < 7: e('s_add_u32 s12, s12, 3584')
    for h in range(2):
        e(f's_lshl_b32 s12, s5, 1')
        if h: e('s_add_u32 s12, s12, 1')
        div7(e, 13, 14, 12, 15)
        e(f's_mul_i32 s13, s13, {NFR}')
        e('s_add_u32 s13, s13, s14')
        e(f's_cmp_lt_u32 s14, {GA}')
        e(f's_cselect_b32 s15, 0, {29*GA-GA}')
        e('s_add_u32 s13, s13, s15')
        e(f's_lshl_b32 s{60+2*h}, s13, 10')
        e(f's_cmp_lt_u32 s14, {GA}')
        e(f's_cselect_b32 s{61+2*h}, {GA}, {GB}')
        e(f's_lshl_b32 s{61+2*h}, s{61+2*h}, 10')
    e('v_cmp_lt_u32 s[64:65], 1, v1')
    e('v_mov_b32 v6, s60'); e('v_mov_b32 v7, s62')
    e('v_cndmask_b32 v6, v6, v7, s[64:65]')
    e('v_mov_b32 v7, s61'); e('v_mov_b32 v8, s63')
    e('v_cndmask_b32 v7, v7, v8, s[64:65]')
    e('v_and_b32 v8, 1, v1')
    e('v_lshlrev_b32 v8, 6, v8')
    e('s_lshl_b32 s12, s7, 8')
    e(f's_add_u32 s12, s12, {WGU}')
    e('v_add3_u32 v6, v6, v8, s12')
    e('s_mul_i32 s13, s6, 7')
    e('v_lshrrev_b32 v9, 1, v2')
    e('v_add_u32 v9, s13, v9')
    e('v_mul_u32_u24 v9, v9, v7')
    e('v_and_b32 v10, 1, v2')
    e('v_lshlrev_b32 v10, 9, v10')
    e('v_add3_u32 v5, v6, v9, v10')
    e('v_cndmask_b32 v5, v4, v5, vcc')
    transpose_and_store(Lr, Or)
    e('s_mov_b32 s12, 0x3f803f80')
    CS = 80
    for j in range(8):
        e(f'v_mov_b32 v{CS+j}, 0')
    for p in range(4):
        for j in range(8):
            e(f'v_dot2c_f32_bf16 v{CS+j}, s12, v{Or+4*j+p}')
    for j in range(8):
        e(f'v_add_f32_dpp v{CS+j}, v{CS+j}, v{CS+j} row_ror:4 row_mask:0xf bank_mask:0xf')
    for j in range(8):
        e(f'v_add_f32_dpp v{CS+j}, v{CS+j}, v{CS+j} row_ror:8 row_mask:0xf bank_mask:0xf')
    T = 88
    for op in ('v_permlane16_swap_b32', 'v_permlane32_swap_b32'):
        for j in range(8): e(f'v_mov_b32 v{T+j}, v{CS+j}')
        for j in range(8): e(f'{op} v{CS+j}, v{T+j}')
        for j in range(8): e(f'v_add_f32 v{CS+j}, v{CS+j}, v{T+j}')
    for j in range(8):
        e(f'v_cvt_pk_bf16_f32 v{T+j}, v{CS+j}, v{CS+j}')
    for j in range(8):
        e(f'v_lshlrev_b32 v{T+j}, 16, v{T+j}')
    for j in range(8):
        e(f'v_sub_f32 v{CS+j}, v{CS+j}, v{T+j}')
    P = 96
    for j in range(8):
        e(f'v_cvt_pk_bf16_f32 v{P+2*j}, v{T+j}, v{CS+j}')
        e(f'v_mov_b32 v{P+2*j+1}, v{P+2*j}')
    e('v_mul_u32_u24 v9, 28, v7')
    e('s_lshr_b32 s13, s6, 1')
    e('s_lshl_b32 s13, s13, 9')
    e('s_and_b32 s14, s6, 1')
    e('s_lshl_b32 s14, s14, 3')
    e('s_add_u32 s13, s13, s14')
    e('v_add3_u32 v5, v6, v9, s13')
    e('s_mov_b64 exec, 0xf')
    for j in range(8):
        e(f'buffer_store_dwordx2 v[{P+2*j}:{P+2*j+1}], v5, s[44:47], 0 offen offset:{(8*(j>>2)+(j&3))*16}')
    e('s_endpgm')
    e.vm = []; e.lg = []; e.hist = []
    e.label(f'{N}_D')
    e('s_and_b32 s4, s2, 7')
    e('s_lshr_b32 s5, s2, 3')
    e('s_and_b32 s6, s5, 1')
    e('s_lshr_b32 s5, s5, 1')
    e('s_lshl_b32 s5, s5, 3')
    e('s_add_u32 s5, s5, s4')
    e('s_cmp_ge_u32 s5, 112')
    e(f's_cbranch_scc1 {N}_end')
    div7(e, 7, 8, 5, 9)
    srd(e, 48, 9, D * F * 2)
    e('v_and_b32 v1, 3, v0')
    e('v_lshrrev_b32 v2, 2, v0')
    e('s_mul_i32 s9, s7, 112*896')
    e('s_lshl_b32 s12, s8, 7')
    e('s_add_u32 s9, s9, s12')
    e('s_lshl_b32 s12, s6, 6')
    e('s_add_u32 s9, s9, s12')
    e('v_mul_u32_u24 v3, 8*896, v2')
    e('v_lshl_add_u32 v3, v1, 4, v3')
    e('v_add_u32 v3, s9, v3')
    e('v_cmp_gt_u32 vcc, 14, v2')
    e('v_mov_b32 v4, 0x7ff00000')
    e('v_cndmask_b32 v3, v4, v3, vcc')
    e('s_movk_i32 s12, 3584')
    for i in range(8):
        so, off = ('0', 896 * i) if i < 4 else ('s12', 896 * (i - 4))
        e(f'buffer_load_dwordx4 v[{Lr+4*i}:{Lr+4*i+3}], v3, s[48:51], {so} offen offset:{off}')
    e('s_mul_i32 s9, s8, 112')
    e('s_mul_i32 s13, s7, 7')
    e('s_add_u32 s9, s9, s13')
    e('s_lshl_b32 s9, s9, 1')
    e('s_add_u32 s9, s9, s6')
    e('s_lshl_b32 s9, s9, 10')
    e(f's_add_u32 s9, s9, {WD}')
    e('v_lshrrev_b32 v6, 1, v2')
    e('v_lshlrev_b32 v6, 11, v6')
    e('v_and_b32 v7, 1, v2')
    e('v_lshl_add_u32 v6, v7, 9, v6')
    e('v_lshrrev_b32 v7, 1, v1')
    e('v_lshl_add_u32 v6, v7, 8, v6')
    e('v_and_b32 v7, 1, v1')
    e('v_lshl_add_u32 v6, v7, 6, v6')
    e('v_add_u32 v5, s9, v6')
    e('v_cndmask_b32 v5, v4, v5, vcc')
    transpose_and_store(Lr, Or)
    epilogue(e, N)
    return dict(name=N, grid=256, block=512, lds=0, vgpr=112, agpr=0)

CS_ = 4608
HC = [0, 8 * CS_]
UBL = [16 * CS_, 16 * CS_ + 7680]
XCH = 16 * CS_ + 2 * 7680
CONV_LDS = XCH + 32768
OFFS = (0, 1, 5, 9, 13, 5, 9, 13)

def gen_conv(e):
    N = 'conv_kernel'
    prologue(e, N, 224)
    srd(e, 48, 4, D * S * 2)
    e('s_and_b32 s4, s2, 7')
    e('s_lshr_b32 s5, s2, 3')
    e('s_and_b32 s6, s5, 3')
    e('s_lshr_b32 s5, s5, 2')
    e('s_lshl_b32 s5, s5, 3')
    e('s_add_u32 s5, s5, s4')
    e('s_lshl_b32 s5, s5, 3')
    e('s_lshl_b32 s6, s6, 1')
    e('s_add_u32 s5, s5, s6')
    e('s_lshr_b32 s6, s3, 1')
    e('s_and_b32 s7, s3, 1')
    e('s_lshl_b32 s8, s5, 1')
    e(f's_add_u32 s60, s{PTR(5)}, s8')
    e(f's_addc_u32 s61, s{PTR(5)+1}, 0')
    e('s_load_dword s62, s[60:61], 0')
    e('v_lshlrev_b32 v1, 4, v0')
    e('s_add_u32 s8, s5, s6')
    e('s_lshl_b32 s9, s8, 12')
    e('s_lshl_b32 s10, s7, 11')
    e('s_add_u32 s10, s10, s9')
    e(f's_add_u32 s10, s10, {KVR}')
    e('buffer_load_dwordx4 v[16:19], v1, s[44:47], s10 offen')
    e('buffer_load_dwordx4 v[20:23], v1, s[44:47], s10 offen offset:1024')
    e('v_lshrrev_b32 v2, 3, v0')
    e('v_and_b32 v3, 7, v0')
    e('v_add_u32 v4, v2, v3')
    e('v_subrev_u32 v4, 8, v4')
    e('v_max_i32 v5, 0, v4')
    e('v_lshlrev_b32 v5, 1, v5')
    e('buffer_load_ushort v24, v5, s[48:51], s9 offen')
    e(f's_mul_i32 s11, s6, {8*CS_}')
    e(f's_mul_i32 s12, s7, {4*CS_}')
    e('s_add_u32 s11, s11, s12')
    e('s_lshl_b32 s12, s7, 3')
    e('s_add_u32 s12, s12, s9')
    dma = None
    for pc in range(4):
        e('s_cmp_eq_u32 s7, 0')
        e(f's_cselect_b32 s13, {OFFS[pc]}, {OFFS[4+pc]}')
        e('s_lshl_b32 s13, s13, 4')
        e(f's_add_u32 s13, s13, {pc*CS_ + 64}')
        e('s_add_u32 s13, s13, s11')
        e('s_mov_b32 m0, s13')
        for q in range(4):
            dma = e(f'buffer_load_dwordx4 v1, s[48:51], s12 offen offset:{1024*q} lds')
        if pc < 3: e('s_add_u32 s12, s12, 2')
    e('v_lshrrev_b32 v6, 5, v0')
    e('v_and_b32 v7, 31, v0')
    e('s_lshl_b32 s13, s7, 5')
    e('s_lshl_b32 s14, s6, 4')
    e('s_add_u32 s13, s13, s14')
    e('v_lshl_add_u32 v8, v6, 2, s13')
    e('v_mul_u32_u24 v9, 28672, v8')
    e('v_lshl_add_u32 v9, v7, 4, v9')
    e('s_lshr_b32 s13, s5, 3')
    e('s_lshl_b32 s13, s13, 9')
    e('s_and_b32 s14, s5, 7')
    e('s_lshl_b32 s14, s14, 1')
    e('s_add_u32 s13, s13, s14')
    e('v_add_u32 v9, s13, v9')
    e('v_lshlrev_b32 v10, 8, v8')
    e('v_lshl_add_u32 v10, v7, 3, v10')
    ioff = [8 * (r >> 2) + (r & 3) for r in range(8)]
    for r in range(8):
        e(f's_mov_b32 s{64+r}, {ioff[r]*28672 + X0T}')
    e(f's_mov_b32 s72, {ST0}')
    XQ, ST = 100, 108
    for r in range(8):
        e(f'buffer_load_dword v{XQ+r}, v9, s[44:47], s{64+r} offen')
        e(f'buffer_load_dwordx2 v[{ST+2*r}:{ST+2*r+1}], v10, s[44:47], s72 offen offset:{ioff[r]*256}')
    e('v_mov_b32 v28, 0'); e('v_mov_b32 v29, 0'); e('v_mov_b32 v30, 0'); e('v_mov_b32 v31, 0')
    e('s_mov_b32 s14, 0xd95d9510')
    e('v_lshlrev_b32 v11, 2, v2')
    e('v_lshrrev_b32 v11, v11, s14')
    e('v_and_b32 v11, 15, v11')
    e(f'v_mul_u32_u24 v12, {CS_}, v2')
    e('v_lshl_add_u32 v11, v11, 4, v12')
    e(f's_mul_i32 s15, s6, {8*CS_}')
    e('v_add_u32 v11, s15, v11')
    e('v_min_u32 v12, 2, v3')
    e('v_lshl_add_u32 v12, v12, 4, v11')
    e('ds_write_b128 v12, v[28:31]')
    e(f's_mul_i32 s15, s6, 7680')
    e(f's_mul_i32 s13, s7, 1280')
    e('s_add_u32 s15, s15, s13')
    e(f's_add_u32 s15, s15, {UBL[0] + 64*80}')
    e('v_add_u32 v12, s15, v1')
    e('ds_write_b128 v12, v[28:31]')
    e('ds_write_b128 v12, v[28:31] offset:256')
    e('v_cmp_le_i32 vcc, 0, v4')
    e('v_lshl_add_u32 v12, v3, 1, v11')
    e('v_cndmask_b32 v24, 0, v24, vcc')
    e('ds_write_b16 v12, v24 offset:48')
    e('v_lshrrev_b32 v12, 2, v0')
    e('v_mul_u32_u24 v12, 80, v12')
    e('v_and_b32 v13, 3, v0')
    e('v_lshl_add_u32 v12, v13, 4, v12')
    e(f's_mul_i32 s15, s6, 7680')
    e(f's_mul_i32 s13, s7, 2560')
    e('s_add_u32 s15, s15, s13')
    e(f's_add_u32 s15, s15, {UBL[0]}')
    e('v_add_u32 v12, s15, v12')
    e('ds_write_b128 v12, v[16:19]')
    e('ds_write_b128 v12, v[20:23] offset:1280')
    e('v_add_u32 v12, 1, v7')
    e('v_and_b32 v13, 7, v12')
    e('v_lshlrev_b32 v14, 2, v13')
    e('v_lshrrev_b32 v14, v14, s14')
    e('v_and_b32 v14, 15, v14')
    e('v_lshrrev_b32 v12, 3, v12')
    e('v_add3_u32 v12, v12, v14, v6')
    e(f'v_mul_u32_u24 v13, {CS_}, v13')
    e('v_lshl_add_u32 v12, v12, 4, v13')
    e(f's_mul_i32 s15, s6, {8*CS_}')
    e('s_lshl_b32 s13, s7, 10')
    e('s_add_u32 s15, s15, s13')
    e('v_add_u32 v12, s15, v12')
    e('v_sub_u32 v13, 31, v7')
    e('v_mul_u32_u24 v13, 80, v13')
    e('v_lshl_add_u32 v13, v6, 4, v13')
    e(f's_mul_i32 s15, s6, 7680')
    e(f's_mul_i32 s13, s7, 1280')
    e('s_add_u32 s15, s15, s13')
    e(f's_add_u32 s15, s15, {UBL[0]}')
    e('v_add_u32 v13, s15, v13')
    e.wait_vm(dma)
    e.wait_all(vm=False)
    e('s_barrier')
    ACC0, ACC1 = 32, 48
    FB = 64
    def reads(n):
        b = FB + 16 * (n & 1)
        ia = 80 * (n >> 1) + 32 * (n & 1)
        e(f'ds_read_b128 v[{b}:{b+3}], v12 offset:{32*n}')
        e(f'ds_read_b128 v[{b+4}:{b+7}], v13 offset:{ia}')
        e(f'ds_read_b128 v[{b+8}:{b+11}], v13 offset:{ia+2560}')
        e(f'ds_read_b128 v[{b+12}:{b+15}], v12 offset:{32*n+2048}')
    reads(0)
    for n in range(32):
        if n + 1 < 32: reads(n + 1)
        b = FB + 16 * (n & 1)
        c1 = '0' if n == 0 else f'v[{ACC1}:{ACC1+15}]'
        c0 = '0' if n == 0 else f'v[{ACC0}:{ACC0+15}]'
        e(f'v_mfma_f32_32x32x16_bf16 v[{ACC1}:{ACC1+15}], v[{b+4}:{b+7}], v[{b}:{b+3}], {c1}')
        e(f'v_mfma_f32_32x32x16_bf16 v[{ACC0}:{ACC0+15}], v[{b+8}:{b+11}], v[{b}:{b+3}], {c0}')
        e(f'v_mfma_f32_32x32x16_bf16 v[{ACC1}:{ACC1+15}], v[{b+8}:{b+11}], v[{b+12}:{b+15}], v[{ACC1}:{ACC1+15}]')
    e('s_lshl_b32 s13, s3, 11')
    e(f's_add_u32 s13, s13, {XCH}')
    e('v_add_u32 v14, s13, v1')
    e('s_lshl_b32 s13, s3, 13')
    e(f's_add_u32 s13, s13, {XCH}')
    e('v_add_u32 v15, s13, v1')
    for t, acc in ((0, ACC0), (1, ACC1)):
        for g in range(2):
            for q in range(2):
                r = acc + 8 * g + 4 * q
                e(f'ds_write_b128 v14, v[{r}:{r+3}] offset:{(2*g+t)*8192 + q*1024}')
    e('v_sub_u32 v16, 52, v8')
    e('v_mul_u32_u24 v16, 80, v16')
    e('v_sub_u32 v17, 31, v7')
    e('v_lshl_add_u32 v16, v17, 1, v16')
    e(f'v_add_u32 v16, {UBL[0]}, v16')
    UV = 124
    for ch in range(2):
        for r in range(8):
            e(f'ds_read_u16 v{UV+8*ch+r}, v16 offset:{UBL[ch] - UBL[0] + 80*(11-ioff[r])}')
    e.wait_all(vm=False)
    e('s_barrier')
    for src in range(4):
        for q in range(2):
            r = FB + 8 * src + 4 * q
            e(f'ds_read_b128 v[{r}:{r+3}], v15 offset:{src*2048 + q*1024}')
    e('s_lshl_b32 s60, s62, 16')
    e('s_and_b32 s61, s62, 0xffff0000')
    e('s_mov_b32 s63, 0xffff0000')
    e(f's_mov_b32 s73, {X1 - X0T}')
    e(f's_mov_b32 s74, {YT - X0T}')
    e('v_add_u32 v18, s73, v9')
    e('v_add_u32 v19, s74, v9')
    for r in range(8):
        y0, y1 = FB + r, FB + 16 + r
        e(f'v_add_f32 v{y0}, v{y0}, v{FB+8+r}')
        e(f'v_add_f32 v{y1}, v{y1}, v{FB+24+r}')
        e(f'v_lshlrev_b32 v20, 16, v{UV+r}')
        e(f'v_lshlrev_b32 v21, 16, v{UV+8+r}')
        e(f'v_fmac_f32 v{y0}, s60, v20')
        e(f'v_fmac_f32 v{y1}, s61, v21')
        e(f'v_cvt_pk_bf16_f32 v{ACC0+r}, v{y0}, v{y1}')
        e(f'v_lshlrev_b32 v{y0}, 16, v{ACC0+r}')
        e(f'v_and_b32 v{y1}, s63, v{ACC0+r}')
        e(f'v_lshlrev_b32 v22, 16, v{XQ+r}')
        e(f'v_and_b32 v23, s63, v{XQ+r}')
        e(f'v_sub_f32 v24, v22, v{ST+2*r}')
        e(f'v_sub_f32 v25, v23, v{ST+2*r}')
        e(f'v_mul_f32 v24, v24, v{ST+2*r+1}')
        e(f'v_mul_f32 v25, v25, v{ST+2*r+1}')
        e(f'v_fmac_f32 v22, v24, v{y0}')
        e(f'v_fmac_f32 v23, v25, v{y1}')
        e(f'v_cvt_pk_bf16_f32 v{ACC1+r}, v22, v23')
        e(f'buffer_store_dword v{ACC0+r}, v19, s[44:47], s{64+r} offen')
        e(f'buffer_store_dword v{ACC1+r}, v18, s[44:47], s{64+r} offen')
    epilogue(e, N)
    return dict(name=N, grid=224, block=256, lds=CONV_LDS, vgpr=140, agpr=0)

def gen_g1(e, layer):
    N = f'g1l{layer}_kernel'
    XIN = X1 if layer == 0 else X3
    HOUT = H0 if layer == 0 else H1
    prologue(e, N, 256)
    e('s_and_b32 s4, s2, 7')
    e('s_lshr_b32 s5, s2, 3')
    e('s_and_b32 s6, s5, 15')
    e('s_lshr_b32 s5, s5, 4')
    e('s_lshl_b32 s4, s4, 1')
    e('s_add_u32 s4, s4, s5')
    e('s_lshl_b32 s4, s4, 2')
    e('s_add_u32 s4, s4, s3')
    e('v_lshlrev_b32 v1, 4, v0')
    e('s_mul_i32 s7, s4, 28672')
    e(f's_add_u32 s7, s7, {XIN}')
    e(f's_mul_i32 s8, s6, {NFR*1024}')
    e('s_lshl_b32 s9, s3, 12')
    e('s_add_u32 s8, s8, s9')
    e(f's_add_u32 s8, s8, {WGU}')
    X, XA, ACC = 16, 128, 132
    RING = 8
    e('v_add_u32 v2, 0x10000, v1')
    e('v_add_u32 v3, 0x20000, v1')
    e('s_mov_b32 s12, 0x3f803f80')
    e('v_mov_b32 v4, 0'); e('v_mov_b32 v5, 0')
    order = [(t, kb) for kb in range(29) for t in range(GA)] + [(GA + t, kb) for kb in range(29) for t in range(GB)]
    assert len(order) == NFR
    nrounds = (NFR + 15) // 16
    work = []
    xi = 0
    for r in range(nrounds):
        need_kb = min(28, (16 * (r + 1) + GA - 1) // GA + 2)
        while xi < need_kb:
            work.append(('x', xi)); xi += 1
        for q in range(4): work.append(('w', r, q))
    chunk_tok = {}
    state = dict(xs=0)
    def issue(item):
        if item[0] == 'x':
            kb = item[1]
            if kb % 4 == 0 and kb > 0:
                e('s_add_u32 s7, s7, 4096')
            e(f'buffer_load_dwordx4 v[{X+4*kb}:{X+4*kb+3}], v1, s[44:47], s7 offen offset:{1024*(kb%4)}')
        else:
            _, r, q = item
            if q == 0:
                slot = (16 * r) % 160
                e(f's_add_u32 s10, s9, {slot*1024}')
                e('s_mov_b32 m0, s10')
                if r > 0: e('s_add_u32 s8, s8, 16384')
            chunk_tok[r] = e(f'buffer_load_dwordx4 v1, s[44:47], s8 offen offset:{1024*q} lds')
    wi = 0
    while not (work[wi][0] == 'w' and work[wi][1] == 3):
        issue(work[wi]); wi += 1
    barriers_done = set()
    def ensure_round(r):
        if r in barriers_done or r >= nrounds: return
        assert r in chunk_tok and all(not (w[0] == 'w' and w[1] == r) for w in work[wi:]), 'round not fully issued'
        e.wait_vm(chunk_tok[r])
        e('s_barrier')
        barriers_done.add(r)
    def lds_read(n):
        ensure_round(n // 16)
        slot = n % 160
        base = ('v1', 'v2', 'v3')[slot // 64]
        e(f'ds_read_b128 {ar(4*(n%RING),4)}, {base} offset:{(slot%64)*1024}')
    AHEAD = 4
    for n in range(AHEAD): lds_read(n)
    side = []
    def stats_ops(kb):
        return [s for d in range(4) for s in (f'v_dot2c_f32_bf16 v4, s12, v{X+4*kb+d}', f'v_dot2c_f32_bf16 v5, v{X+4*kb+d}, v{X+4*kb+d}')]
    def final_ops():
        o = []
        for r in (4, 5):
            o += [f'v_mov_b32 v6, v{r}', f'v_permlane32_swap_b32 v{r}, v6', f'v_add_f32 v{r}, v{r}, v6']
        o += [f'v_mul_f32 v4, {f32bits(-1.0/D):#x}, v4',
              f'v_mul_f32 v5, {f32bits(1.0/D):#x}, v5',
              'v_fma_f32 v5, -v4, v4, v5',
              'v_max_f32 v5, 0, v5',
              f'v_add_f32 v5, {f32bits(EPS):#x}, v5',
              'v_rcp_f32 v5, v5',
              f'v_cvt_pk_bf16_f32 v{XA}, v4, v4',
              f'v_lshlrev_b32 v6, 16, v{XA}',
              'v_sub_f32 v6, v4, v6',
              f'v_cvt_pk_bf16_f32 v{XA+1}, v6, v6',
              f'v_mov_b32 v{XA+2}, v{XA}',
              f'v_mov_b32 v{XA+3}, v{XA+1}']
        return o
    def epi_ops(t):
        a = ACC + 16 * t
        o = []
        for i in range(8):
            o.append(f'v_max_f32 v{a+i}, 0, v{a+i}')
        for i in range(8):
            o.append(f'v_mul_f32 v{a+i}, v{a+i}, v{a+8+i}')
        for d in range(4):
            o.append(f'v_cvt_pk_bf16_f32 v{a+8+d}, v{a+2*d}, v{a+2*d+1}')
        so = 's13' if t < 4 else 's14'
        o.append(f'buffer_store_dwordx4 v[{a+8}:{a+11}], v1, s[44:47], {so} offen offset:{1024*(t%4)} sc1')
        return o
    e('s_mul_i32 s13, s4, 112*1024')
    e('s_mul_i32 s14, s6, 7*1024')
    e('s_add_u32 s13, s13, s14')
    e(f's_add_u32 s13, s13, {HOUT}')
    e('s_add_u32 s14, s13, 4096')
    side += stats_ops(0) + stats_ops(1)
    for n, (t, kb) in enumerate(order):
        if t == 0 and kb + 2 < 28: side += stats_ops(kb + 2)
        if t == 0 and kb == 26: side += final_ops()
        if n == GA * 29 + 1:
            for tt in range(GA): side += epi_ops(tt)
            side += ['v_lshlrev_b32 v6, 2, v0', f's_lshl_b32 s15, s4, 7', f's_add_u32 s15, s15, {R2 + layer*8192}',
                     'v_and_b32 v6, 127, v6', 'buffer_store_dword v5, v6, s[44:47], s15 offen sc1']
        if kb == 28 and t == 0:
            while side: e(side.pop(0))
        a = ACC + 16 * t
        b = XA if kb == 28 else X + 4 * kb
        c = '0' if kb == 0 else f'v[{a}:{a+15}]'
        e(f'v_mfma_f32_32x32x16_bf16 v[{a}:{a+15}], {ar(4*(n%RING),4)}, v[{b}:{b+3}], {c}')
        if n + AHEAD < NFR: lds_read(n + AHEAD)
        if wi < len(work) and n % 2 == 0:
            it = work[wi]
            ok = True
            if it[0] == 'w' and it[1] >= 10:
                ok = (it[1] - 10 + 2) in barriers_done
            if ok:
                issue(it); wi += 1
        for _ in range(2):
            if side: e(side.pop(0))
    while side: e(side.pop(0))
    for tt in range(GA, 7):
        for s_ in epi_ops(tt): e(s_)
    epilogue(e, N)
    return dict(name=N, grid=256, block=256, lds=160 * 1024, vgpr=256, agpr=32)

def gen_g2(e, layer):
    N = f'g2l{layer}_kernel'
    XIN = X1 if layer == 0 else X3
    HIN = H0 if layer == 0 else H1
    prologue(e, N, 256)
    e('s_and_b32 s4, s2, 7')
    e('s_lshr_b32 s5, s2, 3')
    e('s_and_b32 s6, s5, 15')
    e('s_cmp_ge_u32 s6, 14')
    e(f's_cbranch_scc1 {N}_end')
    e('s_lshr_b32 s5, s5, 4')
    e('s_lshl_b32 s4, s4, 1')
    e('s_add_u32 s4, s4, s5')
    e('s_cmp_ge_u32 s6, 7')
    e('s_cselect_b32 s5, 1, 0')
    e('s_mul_i32 s7, s5, 7')
    e('s_sub_u32 s6, s6, s7')
    e('s_lshl_b32 s4, s4, 1')
    e('s_add_u32 s4, s4, s5')
    e('s_lshl_b32 s4, s4, 1')
    e('v_lshlrev_b32 v1, 4, v0')
    e('s_mul_i32 s7, s4, 112*1024')
    e('s_mul_i32 s8, s3, 28*1024')
    e('s_add_u32 s7, s7, s8')
    e(f's_add_u32 s7, s7, {HIN}')
    e('s_add_u32 s9, s7, 112*1024')
    e('s_mul_i32 s10, s6, 112*2048')
    e('s_lshl_b32 s8, s8, 1')
    e('s_add_u32 s10, s10, s8')
    e(f's_add_u32 s10, s10, {WD}')
    ACC, XR, YR, RR, HR = 16, 80, 88, 96, 100
    NBUF = 19
    e('s_lshr_b32 s11, s3, 1')
    e('s_add_u32 s11, s11, s4')
    e('s_and_b32 s12, s3, 1')
    e('s_lshl_b32 s13, s6, 1')
    e('s_add_u32 s12, s12, s13')
    e('s_mul_i32 s13, s11, 28672')
    e('s_lshl_b32 s14, s12, 11')
    e('s_add_u32 s13, s13, s14')
    def loads(n):
        if n > 0 and n % 2 == 0: e('s_add_u32 s10, s10, 4096')
        if n > 0 and n % 4 == 0:
            e('s_add_u32 s7, s7, 4096'); e('s_add_u32 s9, s9, 4096')
        hb = HR + 8 * (n % NBUF)
        e(f'buffer_load_dwordx4 {ar(8*n,4)}, v1, s[44:47], s10 offen offset:{2048*(n%2)}')
        e(f'buffer_load_dwordx4 v[{hb}:{hb+3}], v1, s[44:47], s7 offen offset:{1024*(n%4)}')
        e(f'buffer_load_dwordx4 {ar(8*n+4,4)}, v1, s[44:47], s10 offen offset:{2048*(n%2)+1024}')
        e(f'buffer_load_dwordx4 v[{hb+4}:{hb+7}], v1, s[44:47], s9 offen offset:{1024*(n%4)}')
    PRE = 14
    for n in range(PRE): loads(n)
    for n in range(28):
        hb = HR + 8 * (n % NBUF)
        for sbl in range(2):
            for ntl in range(2):
                a = ACC + 16 * (2 * sbl + ntl)
                c = '0' if n == 0 else f'v[{a}:{a+15}]'
                e(f'v_mfma_f32_32x32x16_bf16 v[{a}:{a+15}], {ar(8*n+4*ntl,4)}, v[{hb+4*sbl}:{hb+4*sbl+3}], {c}')
        if n + PRE < 28: loads(n + PRE)
        if n + PRE == 28:
            e(f's_add_u32 s14, s13, {XIN}')
            e(f'buffer_load_dwordx4 v[{XR}:{XR+3}], v1, s[44:47], s14 offen')
            e(f'buffer_load_dwordx4 v[{XR+4}:{XR+7}], v1, s[44:47], s14 offen offset:1024')
            e('v_and_b32 v2, 31, v0')
            e('v_lshlrev_b32 v3, 2, v2')
            e('s_lshl_b32 s15, s11, 7')
            e(f's_add_u32 s15, s15, {R2 + layer*8192}')
            e(f'buffer_load_dword v{RR}, v3, s[44:47], s15 offen')
            if layer == 0:
                e(f's_add_u32 s14, s13, {YT}')
                e(f'buffer_load_dwordx4 v[{YR}:{YR+3}], v1, s[44:47], s14 offen')
                e(f'buffer_load_dwordx4 v[{YR+4}:{YR+7}], v1, s[44:47], s14 offen offset:1024')
    e('s_lshl_b32 s14, s3, 12')
    e('v_add_u32 v4, s14, v1')
    e('s_lshl_b32 s14, s3, 14')
    e('v_add_u32 v5, s14, v1')
    for o in range(4):
        for q in range(4):
            r = ACC + 16 * o + 4 * q
            e(f'ds_write_b128 v4, v[{r}:{r+3}] offset:{o*16384 + q*1024}')
    e.wait_all(vm=False)
    e('s_barrier')
    for src in range(4):
        for q in range(4):
            r = HR + 16 * src + 4 * q
            e(f'ds_read_b128 v[{r}:{r+3}], v5 offset:{src*4096 + q*1024}')
    e('s_mov_b32 s60, 0xffff0000')
    A = HR
    for i in range(16):
        e(f'v_add_f32 v{A+i}, v{A+i}, v{A+16+i}')
        e(f'v_add_f32 v{A+32+i}, v{A+32+i}, v{A+48+i}')
    for i in range(16):
        e(f'v_add_f32 v{A+i}, v{A+i}, v{A+32+i}')
    XF = ACC
    for d in range(8):
        e(f'v_lshlrev_b32 v{XF+2*d}, 16, v{XR+d}')
        e(f'v_and_b32 v{XF+2*d+1}, s60, v{XR+d}')
    for i in range(16):
        e(f'v_fmac_f32 v{XF+i}, v{RR}, v{A+i}')
    for d in range(8):
        e(f'v_cvt_pk_bf16_f32 v{XR+d}, v{XF+2*d}, v{XF+2*d+1}')
    if layer == 1:
        srd(e, 48, 10, XB)
        e('s_lshl_b32 s14, s11, 5')
        e('v_add_u32 v2, s14, v2')
        e('v_mul_u32_u24 v2, 896, v2')
        e('v_lshrrev_b32 v3, 5, v0')
        e('v_lshl_add_u32 v2, v3, 4, v2')
        e('s_lshl_b32 s14, s12, 6')
        e(f'buffer_store_dwordx4 v[{XR}:{XR+3}], v2, s[48:51], s14 offen')
        e(f'buffer_store_dwordx4 v[{XR+4}:{XR+7}], v2, s[48:51], s14 offen offset:32')
    else:
        e('s_mov_b32 s61, 0x3f803f80')
        e('v_mov_b32 v6, 0'); e('v_mov_b32 v7, 0')
        for d in range(8):
            e(f'v_dot2c_f32_bf16 v6, s61, v{XR+d}')
            e(f'v_dot2c_f32_bf16 v7, v{XR+d}, v{XR+d}')
        for r in (6, 7):
            e(f'v_mov_b32 v8, v{r}')
            e(f'v_permlane32_swap_b32 v{r}, v8')
            e(f'v_add_f32 v{r}, v{r}, v8')
        e('s_mul_i32 s14, s11, 14*256')
        e(f's_add_u32 s14, s14, {EXCH}')
        e('s_lshl_b32 s15, s12, 8')
        e('s_add_u32 s15, s15, s14')
        e('v_lshlrev_b32 v3, 3, v2')
        e('buffer_store_dwordx2 v[6:7], v3, s[44:47], s15 offen sc1')
        for d in range(8):
            e(f'v_lshlrev_b32 v{XF+2*d}, 16, v{XR+d}')
            e(f'v_and_b32 v{XF+2*d+1}, s60, v{XR+d}')
            e(f'v_lshlrev_b32 v{XF+16+2*d}, 16, v{YR+d}')
            e(f'v_and_b32 v{XF+16+2*d+1}, s60, v{YR+d}')
        e('v_lshrrev_b32 v8, 5, v0')
        e('v_mul_u32_u24 v8, 7*256, v8')
        e('v_add_u32 v3, v3, v8')
        e('s_mov_b32 s62, 0')
        e.wait_all(); e.fence()
        e.label(f'{N}_poll')
        P = HR
        for i in range(7):
            e(f'buffer_load_dwordx2 v[{P+2*i}:{P+2*i+1}], v3, s[44:47], s14 offen offset:{256*i} sc1')
        e(f'v_or_b32 v8, v{P+1}, v{P+3}')
        for i in range(2, 7):
            e(f'v_or_b32 v8, v8, v{P+2*i+1}')
        e('v_cmp_gt_i32 vcc, 0, v8')
        e('s_add_u32 s62, s62, 1')
        e('s_cmp_lt_u32 s62, 0x40000')
        e('s_cselect_b64 s[64:65], vcc, 0')
        e('s_cmp_lg_u64 s[64:65], 0')
        e(f's_cbranch_scc1 {N}_poll')
        e.fence()
        for i in range(1, 7):
            e(f'v_add_f32 v{P}, v{P}, v{P+2*i}')
            e(f'v_add_f32 v{P+1}, v{P+1}, v{P+2*i+1}')
        for r in (P, P + 1):
            e(f'v_mov_b32 v8, v{r}')
            e(f'v_permlane32_swap_b32 v{r}, v8')
            e(f'v_add_f32 v{r}, v{r}, v8')
        e(f'v_mul_f32 v6, {f32bits(1.0/D):#x}, v{P}')
        e(f'v_mul_f32 v7, {f32bits(1.0/D):#x}, v{P+1}')
        e('v_fma_f32 v7, -v6, v6, v7')
        e('v_max_f32 v7, 0, v7')
        e(f'v_add_f32 v7, {f32bits(EPS):#x}, v7')
        e('v_rsq_f32 v7, v7')
        e('v_mul_f32 v6, v6, v7')
        for i in range(16):
            e(f'v_fma_f32 v{A+16+i}, v{XF+i}, v7, -v6')
            e(f'v_fmac_f32 v{XF+i}, v{A+16+i}, v{XF+16+i}')
        for d in range(8):
            e(f'v_cvt_pk_bf16_f32 v{XR+d}, v{XF+2*d}, v{XF+2*d+1}')
        e(f's_add_u32 s14, s13, {X3}')
        e(f'buffer_store_dwordx4 v[{XR}:{XR+3}], v1, s[44:47], s14 offen sc1')
        e(f'buffer_store_dwordx4 v[{XR+4}:{XR+7}], v1, s[44:47], s14 offen offset:1024 sc1')
    epilogue(e, N)
    return dict(name=N, grid=256, block=256, lds=65536, vgpr=256, agpr=224)

def main():
    e = Emitter()
    ks = [gen_prep(e), gen_conv(e), gen_g1(e, 0), gen_g2(e, 0), gen_g1(e, 1), gen_g2(e, 1)]
    head = open(f'cdna_kernels/{NAME}.s.ref').read().split('; Override launch')[0]
    out = [head.rstrip('\n')]
    for k in ks:
        out.append(f"; @launch kernel={k['name']} grid=({k['grid']},1,1) block=({k['block']},1,1) lds={k['lds']}")
    out.append('.amdgcn_target "amdgcn-amd-amdhsa--gfx950"')
    out.append('.text')
    out.append(e.text())
    out.append('.section .rodata,"a"')
    for k in ks:
        acc = (k['vgpr'] + 3) // 4 * 4
        nfv = acc + k['agpr'] if k['agpr'] else k['vgpr']
        out.append(f""".p2align 6
.amdhsa_kernel {k['name']}
  .amdhsa_next_free_vgpr {nfv}
  .amdhsa_next_free_sgpr 96
  .amdhsa_accum_offset {acc}
  .amdhsa_group_segment_fixed_size 0
  .amdhsa_kernarg_size 104
  .amdhsa_user_sgpr_count 2
  .amdhsa_user_sgpr_kernarg_segment_ptr 1
  .amdhsa_system_sgpr_workgroup_id_x 1
  .amdhsa_float_denorm_mode_32 3
.end_amdhsa_kernel""")
    path = sys.argv[1] if len(sys.argv) > 1 else f'cdna_kernels/{NAME}.s'
    open(path, 'w').write('\n'.join(out) + '\n')
    print('written', path, 'instrs', e.count, 'nops', e.nops_inserted)

if __name__ == '__main__':
    main()
```
